```python
import torch

def _softmax(x, axis=-1):
    return torch.softmax(x, dim=axis)
def _gelu(x):
    return torch.nn.functional.gelu(x, approximate="tanh")
def _silu(x):
    return torch.nn.functional.silu(x)
def _sigmoid(x):
    return torch.sigmoid(x)
def _layernorm(x, axis=-1, eps=1e-5):
    m = x.mean(dim=axis, keepdim=True)
    v = x.var(dim=axis, keepdim=True, unbiased=False)
    return (x - m) / torch.sqrt(v + eps)
def _scatter_add(tgt, idx, src, axis=0):
    return tgt.clone().index_add_(axis, idx, src)
def _segment_sum(src, seg, n):
    out = torch.zeros((n,) + src.shape[1:], dtype=src.dtype)
    return out.index_add_(0, seg, src)
def _pad(x, pw):
    flat = tuple(v for pair in reversed(pw) for v in pair)
    return torch.nn.functional.pad(x, flat)

kernel_name = 'recurrent_scan__softmax_full_mha__geglu_ffn__prompt'

def setup_inputs():

    _w = (lambda a: (lambda t: t.to(torch.bfloat16) if t.is_floating_point() else t)(torch.as_tensor(a)))
    def _A_setup():
        B, S, D = 1, 2048, 1024
        return {
            "x": _w((lambda *s: torch.randn(*s, dtype=torch.bfloat16) * 0.05)(B, S, D)),
            "wqkv": _w((lambda *s: torch.randn(*s, dtype=torch.bfloat16) * 0.05)(D, 3 * D)),
            "wo": _w((lambda *s: torch.randn(*s, dtype=torch.bfloat16) * 0.05)(D, D)),
        }
    _A_in = _A_setup()

    def _B_setup():
        B, S, D, F = 1, 2048, 1024, 3584
        return {
            "x": _w((lambda *s: torch.randn(*s, dtype=torch.bfloat16) * 0.05)(B, S, D)),
            "w_gate": _w((lambda *s: torch.randn(*s, dtype=torch.bfloat16) * 0.05)(D, F)),
            "w_up": _w((lambda *s: torch.randn(*s, dtype=torch.bfloat16) * 0.05)(D, F)),
            "w_down": _w((lambda *s: torch.randn(*s, dtype=torch.bfloat16) * 0.05)(F, D)),
        }
    _B_in = _B_setup()

    return {
        "A_x": _A_in["x"],
        "A_wqkv": _A_in["wqkv"],
        "A_wo": _A_in["wo"],
        "B_x": _B_in["x"],
        "B_w_gate": _B_in["w_gate"],
        "B_w_up": _B_in["w_up"],
        "B_w_down": _B_in["w_down"],
    }

def reference(A_x, A_wqkv, A_wo, B_x, B_w_gate, B_w_up, B_w_down):
    def _A_ref(x, wqkv, wo):
        B, S, D = x.shape
        H = 32; Dh = D // H
        qkv = (lambda x, *d: x.permute(*d))((x @ wqkv).reshape(B, S, 3, H, Dh), 2, 0, 3, 1, 4)
        q, k, v = qkv[0], qkv[1], qkv[2]
        scale = Dh ** -0.5
        scores = torch.einsum("bhqd,bhkd->bhqk", q, k) * scale
        p = _softmax(scores, axis=-1)
        o = torch.einsum("bhqk,bhkd->bhqd", p, v)
        return (lambda x, *d: x.permute(*d))(o, 0, 2, 1, 3).reshape(B, S, D) @ wo

    def _B_ref(x, w_gate, w_up, w_down):
        return (_gelu(x @ w_gate) * (x @ w_up)) @ w_down

    x = A_x
    xn = _layernorm(x, axis=-1)
    s = _A_ref(xn, A_wqkv, A_wo)
    g = _silu(_B_ref(xn, B_w_gate, B_w_up, B_w_down))
    return x + s * g
```

```python
import sys
HEAD = """; @launch grid=({grid},1,1) block=({block},1,1) lds={lds}
.amdgcn_target "amdgcn-amd-amdhsa--gfx950"
.text
.globl mb_kernel
.p2align 8
.type mb_kernel,@function
mb_kernel:
    s_load_dwordx2 s[4:5], s[0:1], 0
    s_load_dwordx2 s[6:7], s[0:1], 56
    s_waitcnt lgkmcnt(0)
    s_mov_b32 s8, s4
    s_mov_b32 s9, s5
    s_mov_b32 s10, 0x4000000
    s_mov_b32 s11, 0x20000
    s_mov_b32 s12, s6
    s_mov_b32 s13, s7
    s_mov_b32 s14, 0x400000
    s_mov_b32 s15, 0x20000
    v_lshrrev_b32 v1, 6, v0
    s_nop 0
    v_readfirstlane_b32 s16, v1
    s_mul_i32 s17, s2, {nwaves}
    s_add_u32 s17, s17, s16
    s_lshl_b32 s17, s17, 4
{init}
    s_waitcnt vmcnt(0) lgkmcnt(0)
    s_barrier
    s_memtime s[20:21]
    s_memrealtime s[22:23]
    s_waitcnt lgkmcnt(0)
    s_mov_b32 s18, {iters}
.p2align 6
L_loop:
{body}
    s_sub_u32 s18, s18, 1
    s_cmp_lg_u32 s18, 0
    s_cbranch_scc1 L_loop
    s_waitcnt vmcnt(0) lgkmcnt(0)
    s_nop 15
    s_nop 15
    s_memtime s[24:25]
    s_memrealtime s[26:27]
    s_waitcnt lgkmcnt(0)
    s_sub_u32 s24, s24, s20
    s_sub_u32 s26, s26, s22
    v_mov_b32 v2, s24
    v_mov_b32 v3, s26
    v_mov_b32 v4, s17
    v_and_b32 v5, 63, v0
    v_cmp_eq_u32 vcc, 0, v5
    s_and_saveexec_b64 s[28:29], vcc
    buffer_store_dwordx2 v[2:3], v4, s[12:15], 0 offen
    s_waitcnt vmcnt(0)
    s_endpgm
.section .rodata,"a"
.p2align 6
.amdhsa_kernel mb_kernel
  .amdhsa_next_free_vgpr {nvgpr}
  .amdhsa_next_free_sgpr 102
  .amdhsa_accum_offset {accoff}
  .amdhsa_group_segment_fixed_size 0
  .amdhsa_kernarg_size 80
  .amdhsa_user_sgpr_count 2
  .amdhsa_user_sgpr_kernarg_segment_ptr 1
  .amdhsa_system_sgpr_workgroup_id_x 1
.end_amdhsa_kernel
"""
def gen(name, body, init="", grid=256, block=256, lds=0, iters=200, nvgpr=128, accoff=128):
    s = HEAD.format(grid=grid, block=block, lds=lds, nwaves=block // 64, init=init, body=body, iters=iters, nvgpr=nvgpr, accoff=accoff)
    open(name, "w").write(s)

def initrand(lo, hi):
    L = ["    v_lshlrev_b32 v6, 2, v0"]
    for i in range(lo, hi):
        L.append(f"    buffer_load_dword v{i}, v6, s[8:11], 0 offen offset:{(i-lo)*4 % 4096}")
    return "\n".join(L)

files = []
ops = {
 "fma":  lambda i: f"    v_fma_f32 v{16+i%32}, v{48+i%16}, v{64+i%16}, v{16+i%32}",
 "add":  lambda i: f"    v_add_f32 v{16+i%32}, v{48+i%16}, v{16+i%32}",
 "exp":  lambda i: f"    v_exp_f32 v{16+i%32}, v{48+i%16}",
 "cvt":  lambda i: f"    v_cvt_pk_bf16_f32 v{16+i%32}, v{48+i%16}, v{64+i%16}",
 "pkadd": lambda i: f"    v_pk_add_f32 v[{16+2*(i%16)}:{17+2*(i%16)}], v[{48+2*(i%8)}:{49+2*(i%8)}], v[{16+2*(i%16)}:{17+2*(i%16)}]",
 "pkmul": lambda i: f"    v_pk_mul_f32 v[{16+2*(i%16)}:{17+2*(i%16)}], v[{48+2*(i%8)}:{49+2*(i%8)}], v[{64+2*(i%8)}:{65+2*(i%8)}]",
 "max3": lambda i: f"    v_max3_f32 v{16+i%32}, v{48+i%16}, v{64+i%16}, v{16+i%32}",
 "dot2": lambda i: f"    v_dot2_f32_bf16 v{16+i%32}, v{48+i%16}, v{64+i%16}, v{16+i%32}",
 "dot2c": lambda i: f"    v_dot2c_f32_bf16 v{16+i%32}, v{48+i%16}, v{64+i%16}",
 "expf16":  lambda i: f"    v_exp_f16 v{16+i%32}, v{48+i%16}",
 "expadd": lambda i: (f"    v_exp_f32 v{16+i%32}, v{48+i%16}" if i%2==0 else f"    v_add_f32 v{16+i%32}, v{48+i%16}, v{16+i%32}"),
 "mfma32": lambda i: f"    v_mfma_f32_32x32x16_bf16 v[{80+16*(i%2)}:{95+16*(i%2)}], v[48:51], v[64:67], v[{80+16*(i%2)}:{95+16*(i%2)}]",
 "mfma16": lambda i: f"    v_mfma_f32_16x16x32_bf16 v[{80+4*(i%8)}:{83+4*(i%8)}], v[48:51], v[64:67], v[{80+4*(i%8)}:{83+4*(i%8)}]",
}
if __name__=="__main__":
    for op, f in ops.items():
        for w in (1, 2, 4):
            body = "\n".join(f(i) for i in range(64))
            n = f"mb_{op}_w{w}.s"
            gen(n, body, init=initrand(16, 112), block=256 * w, iters=200)
            files.append(n)
    print(" ".join(files))
```

```python
from genmb import gen
init = """
    s_getreg_b32 s40, hwreg(HW_REG_HW_ID)
    s_getreg_b32 s41, hwreg(HW_REG_XCC_ID)
    v_mov_b32 v10, s40
    v_mov_b32 v11, s41
    v_mov_b32 v12, s17
    v_and_b32 v5, 63, v0
    v_cmp_eq_u32 vcc, 0, v5
    s_and_saveexec_b64 s[28:29], vcc
    buffer_store_dwordx2 v[10:11], v12, s[12:15], 0 offen offset:8
    s_mov_b64 exec, s[28:29]
"""
body = "\n".join("    v_add_f32 v20, v20, v21" for _ in range(64))
gen("place.s", body, init=init, grid=512, block=256, lds=81920, iters=100, nvgpr=256, accoff=256)
```

```python
from genmb import gen, initrand
files=[]
def t(name, lines, w=1, reps=8):
    body = "\n".join("    "+l for l in lines*reps)
    n=f"a_{name}_w{w}.s"
    gen(n, body, init=initrand(8,168), block=256*w, iters=100, nvgpr=256, accoff=256); files.append(n)
V_ONES=8; V_Q=[12,20]; V_KF=28; V_VF=36; V_L=[44,48]; V_P=[52,60]; V_S=[68,84]; V_O=[100,116]; V_M=[132,148]
def m32(d,A,B,C):
    c = C if isinstance(C,str) else f"v[{C}:{C+15}]"
    return f"v_mfma_f32_32x32x16_bf16 v[{d}:{d+15}], v[{A}:{A+3}], v[{B}:{B+3}], {c}"
def m16(d,A,B): return f"v_mfma_f32_16x16x32_bf16 v[{d}:{d+3}], v[{A}:{A+3}], v[{B}:{B+3}], v[{d}:{d+3}]"
def slot(q, order, czero=False):
    o=q^1; S=V_S[q]; P=V_P[q]; L=[]
    for tok in order.split():
        if tok=="Q1": L.append(m32(V_S[o],V_KF,V_Q[o],"0" if czero else V_M[o]))
        elif tok=="Q2": L.append(m32(V_S[o],V_KF+4,V_Q[o]+4,V_S[o]))
        elif tok=="P1": L.append(m32(V_O[o],V_VF,V_P[o],V_O[o]))
        elif tok=="P2": L.append(m32(V_O[o],V_VF+4,V_P[o]+4,V_O[o]))
        elif tok=="L1": L.append(m16(V_L[o],V_ONES,V_P[o]))
        elif tok=="L2": L.append(m16(V_L[o],V_ONES,V_P[o]+4))
        elif tok=="LS": L.append(f"v_smfmac_f32_16x16x64_bf16 v[{V_L[o]}:{V_L[o]+3}], v[{V_ONES}:{V_ONES+3}], v[{V_P[o]}:{V_P[o]+7}], v7")
        elif tok=="n": L.append("s_nop 0")
        elif tok[0]=="e": i=int(tok[1:]); L.append(f"v_exp_f32 v{S+i}, v{S+i}")
        elif tok[0]=="E": i=int(tok[1:]); L.append(f"v_exp_f32 v{164+q*4+(i&3)}, v{S+i}")
        elif tok[0]=="c": i=int(tok[1:]); L.append(f"v_cvt_pk_bf16_f32 v{P+i}, v{S+2*i}, v{S+2*i+1}")
        elif tok[0]=="C": i=int(tok[1:]); L.append(f"v_cvt_pk_bf16_f32 v{V_P[o]+i}, v{164+o*4+(2*i&3)}, v{164+o*4+(2*i&3)+1}")
    return L
def both(name, order, **k):
    for w in (1,2): t(name, slot(0,order,**k)+slot(1,order,**k), w)
if __name__=="__main__":
    both("cur", "Q1 e0 e1 e2 Q2 e3 c0 e4 c1 P1 e5 e6 e7 P2 c2 e8 c3 e9 L1 e10 e11 c4 L2 e12 c5 e13 e14 c6 e15 n c7")
    both("curz", "Q1 e0 e1 e2 Q2 e3 c0 e4 c1 P1 e5 e6 e7 P2 c2 e8 c3 e9 L1 e10 e11 c4 L2 e12 c5 e13 e14 c6 e15 n c7", czero=True)
    both("dly", "Q1 e0 e1 C6 C7 Q2 e2 e3 e4 P1 e5 c0 e6 c1 P2 e7 e8 c2 n L1 e9 e10 c3 L2 e11 E12 c4 E13 E14 c5 E15")
    both("dly2", "Q1 e0 e1 C6 C7 Q2 e2 e3 e4 P1 e5 c0 e6 c1 P2 e7 e8 e9 L1 c2 e10 c3 L2 e11 E12 c4 E13 E14 c5 E15")
    both("noL", "Q1 e0 e1 C6 C7 Q2 e2 e3 e4 P1 e5 c0 e6 c1 P2 e7 e8 e9 c2 e10 c3 e11 E12 c4 E13 E14 c5 E15")
    both("sm", "Q1 e0 e1 C6 C7 Q2 e2 e3 e4 P1 e5 c0 e6 c1 P2 e7 e8 e9 LS c2 e10 c3 e11 E12 c4 E13 E14 c5 E15")
    both("alt", "Q1 e0 e1 C6 C7 P1 e2 e3 e4 Q2 e5 c0 e6 c1 P2 e7 e8 e9 L1 c2 e10 c3 L2 e11 E12 c4 E13 E14 c5 E15")
    both("valu", "e0 e1 C6 C7 e2 e3 e4 e5 c0 e6 c1 e7 e8 e9 c2 e10 c3 e11 E12 c4 E13 E14 c5 E15")
    both("spread", "Q1 e0 e1 C6 C7 e2 Q2 e3 e4 e5 c0 P1 e6 c1 e7 e8 P2 e9 c2 e10 c3 L1 e11 E12 c4 L2 E13 E14 c5 E15")
    print(" ".join(files))
```

```python
from genmb import gen, initrand
import genmb6 as g6
files=[]
def t(name, order, w=1):
    def slot(q):
        L=[]
        for tok in order.split():
            if tok=="d": L.append(f"ds_read_b128 v[{180+4*(len(L)%4)}:{183+4*(len(L)%4)}], v6 offset:{1024*(len(L)%8)}")
            elif tok=="t": L.append(f"ds_read_b64_tr_b16 v[{200+2*(len(L)%4)}:{201+2*(len(L)%4)}], v5 offset:{1024*(len(L)%8)}")
            elif tok=="s": L.append("s_add_u32 s40, s40, 1")
            elif tok=="w": L.append("s_waitcnt lgkmcnt(8)")
            elif tok=="a": L.append("v_add_u32 v210, s40, v211")
            else: L += g6.slot(q, tok, czero=True)
        return L
    body = "\n".join("    "+l for l in (slot(0)+slot(1))*8)
    n=f"g_{name}.s"
    gen(n, body, init=initrand(8,168)+"\n    v_and_b32 v6, 63, v0\n    v_lshlrev_b32 v5, 3, v6\n    v_lshlrev_b32 v6, 4, v6\n    v_mov_b32 v7, 0x4444", block=256*w, iters=50, nvgpr=256, accoff=256, lds=16384); files.append(n)
base="Q1 e0 e1 C6 C7 Q2 e2 e3 e4 P1 e5 c0 e6 c1 P2 e7 e8 e9 LS c2 e10 c3 e11 E12 c4 E13 E14 c5 E15"
t("base", base)
t("dM", base.replace("Q2","Q2 d"))
t("dM2", base.replace("Q2","Q2 d d"))
t("dM4", base.replace("Q2","Q2 d").replace("Q1","Q1 d").replace("P1","P1 d").replace("P2","P2 d"))
t("tM4", base.replace("Q2","Q2 t").replace("Q1","Q1 t").replace("P1","P1 t").replace("P2","P2 t"))
t("tM3x", base.replace("Q2","Q2 t t t"))
t("dE", base.replace("e3","e3 d"))
t("dC", base.replace("c0","c0 d"))
t("dbeforeM", base.replace("P1","d P1"))
t("dS", base.replace("LS","LS d"))
t("sE", base.replace("e3","e3 s"))
t("sM", base.replace("Q2","Q2 s"))
t("wE", base.replace("P1","w P1"))
t("wM", base.replace("Q2","Q2 w"))
t("dEE", base.replace("E13","E13 d"))
print(" ".join(files))
```
